```python
import torch

def _softmax(x, axis=-1):
    return torch.softmax(x, dim=axis)
def _gelu(x):
    return torch.nn.functional.gelu(x, approximate="tanh")
def _silu(x):
    return torch.nn.functional.silu(x)
def _sigmoid(x):
    return torch.sigmoid(x)
def _layernorm(x, axis=-1, eps=1e-5):
    m = x.mean(dim=axis, keepdim=True)
    v = x.var(dim=axis, keepdim=True, unbiased=False)
    return (x - m) / torch.sqrt(v + eps)
def _scatter_add(tgt, idx, src, axis=0):
    return tgt.clone().index_add_(axis, idx, src)
def _segment_sum(src, seg, n):
    out = torch.zeros((n,) + src.shape[1:], dtype=src.dtype)
    return out.index_add_(0, seg, src)
def _pad(x, pw):
    flat = tuple(v for pair in reversed(pw) for v in pair)
    return torch.nn.functional.pad(x, flat)

kernel_name = 'recurrent_scan__compressed_kv_cla__dense_activation_silu__prompt'

def setup_inputs():

    _w = (lambda a: (lambda t: t.to(torch.bfloat16) if t.is_floating_point() else t)(torch.as_tensor(a)))
    def _A_setup():
        B, H, Sq, Sk, D, M = 1, 32, 2048, 2048, 128, 640
        Dc = 4 * D
        return {
            "x": _w((lambda *s: torch.randn(*s, dtype=torch.bfloat16) * 0.05)(B, Sq, M)),
            "c_kv": _w((lambda *s: torch.randn(*s, dtype=torch.bfloat16) * 0.8)(B, Sk, Dc)),
            "w_q": _w((lambda *s: torch.randn(*s, dtype=torch.bfloat16) * 1.6)(M, H, D) * (M ** -0.5)),
            "w_uk": _w((lambda *s: torch.randn(*s, dtype=torch.bfloat16) * 1.6)(Dc, H, D) * (Dc ** -0.5)),
            "w_uv": _w((lambda *s: torch.randn(*s, dtype=torch.bfloat16) * 0.8)(Dc, H, D) * (Dc ** -0.5)),
            "w_o": _w((lambda *s: torch.randn(*s, dtype=torch.bfloat16) * 0.8)(H, D, M) * ((H * D) ** -0.5)),
        }
    _A_in = _A_setup()

    def _B_setup():
        B, S, D, F = 1, 2048, 640, 1728
        return {
            "x": _w((lambda *s: torch.randn(*s, dtype=torch.bfloat16) * 0.05)(B, S, D)),
            "w1": _w((lambda *s: torch.randn(*s, dtype=torch.bfloat16) * 0.8)(D, F) * (D ** -0.5)),
            "w2": _w((lambda *s: torch.randn(*s, dtype=torch.bfloat16) * 0.2)(F, D) * (F ** -0.5)),
        }
    _B_in = _B_setup()

    return {
        "A_x": _A_in["x"],
        "A_c_kv": _A_in["c_kv"],
        "A_w_q": _A_in["w_q"],
        "A_w_uk": _A_in["w_uk"],
        "A_w_uv": _A_in["w_uv"],
        "A_w_o": _A_in["w_o"],
        "B_x": _B_in["x"],
        "B_w1": _B_in["w1"],
        "B_w2": _B_in["w2"],
    }

def reference(A_x, A_c_kv, A_w_q, A_w_uk, A_w_uv, A_w_o, B_x, B_w1, B_w2):
    def _A_ref(x, c_kv, w_q, w_uk, w_uv, w_o):
        B, Sq, M = x.shape[0], x.shape[1], x.shape[2]
        Sk = c_kv.shape[1]
        H, D = w_q.shape[1], w_q.shape[2]
        q = torch.einsum("bqm,mhd->bhqd", x, w_q)
        k = torch.einsum("bkc,chd->bhkd", c_kv, w_uk)
        v = torch.einsum("bkc,chd->bhkd", c_kv, w_uv)
        scores = torch.einsum("bhqd,bhkd->bhqk", q, k) * (D ** -0.5)
        off = Sk - Sq
        qi = torch.arange(Sq)[:, None]
        kj = torch.arange(Sk)[None, :]
        cmask = kj <= (qi + off)
        scores = torch.where(cmask[None, None], scores, -1e9)
        p = _softmax(scores, axis=-1)
        ctx = torch.einsum("bhqk,bhkd->bhqd", p, v)
        return torch.einsum("bhqd,hdm->bqm", ctx, w_o)

    def _B_ref(x, w1, w2):
        h = torch.einsum("bsd,df->bsf", x, w1)
        h = _silu(h)
        out = torch.einsum("bsf,fd->bsd", h, w2)
        return out

    x = A_x
    xn = _layernorm(x, axis=-1)
    s = _A_ref(xn, A_c_kv, A_w_q, A_w_uk, A_w_uv, A_w_o)
    g = _silu(_B_ref(xn, B_w1, B_w2))
    return x + s * g
```

```python
class Asm:
    def __init__(self):
        self.lines = []
        self._lab = 0
    def __call__(self, s):
        for l in s.strip("\n").split("\n"):
            self.lines.append(l.strip() if l.strip().endswith(":") else "    " + l.strip())
    def raw(self, s): self.lines.append(s)
    def label(self, base="L"):
        self._lab += 1
        return f"{base}_{self._lab}"
    def text(self): return "\n".join(self.lines) + "\n"

def kernel_head(name):
    return f""".globl {name}
.p2align 8
.type {name},@function
{name}:
"""
def kernel_desc(name, vgpr=256, sgpr=102, accum=256):
    return f""".amdhsa_kernel {name}
  .amdhsa_next_free_vgpr {vgpr}
  .amdhsa_next_free_sgpr {sgpr}
  .amdhsa_accum_offset {accum}
  .amdhsa_group_segment_fixed_size 0
  .amdhsa_kernarg_size 96
  .amdhsa_user_sgpr_count 2
  .amdhsa_user_sgpr_kernarg_segment_ptr 1
  .amdhsa_system_sgpr_workgroup_id_x 1
.end_amdhsa_kernel
"""
def module(launches, kernels, header=""):
    out = [header]
    for (n, g, b, lds) in launches:
        out.append(f"; @launch kernel={n} grid=({g},1,1) block=({b},1,1) lds={lds}\n")
    out.append('.amdgcn_target "amdgcn-amd-amdhsa--gfx950"\n.text\n')
    for (n, body, v, s, a) in kernels:
        out.append(kernel_head(n)); out.append(body)
    out.append('.section .rodata,"a"\n')
    for (n, body, v, s, a) in kernels:
        out.append(".p2align 6\n"); out.append(kernel_desc(n, v, s, a))
    return "".join(out)
```

```python
from core import *
WS_XN = 0
WS_K  = 4 << 20
WS_V  = 20 << 20
WS_CH = 36 << 20
WS_WF = 60 << 20
WS_END = 68 << 20
OOB = 0x7ff00000
SRD = dict(ws=4, x=8, ckv=12, wq=16, wuk=20, wuv=24, wo=28, w1=32, w2=36, out=40, dbg=44)
KARG = dict(x=0, ckv=8, wq=16, wuk=24, wuv=32, wo=40, w1=56, w2=64, out=72, dbg=80, ws=88)
SIZE = dict(x=2048*640*2, ckv=2048*512*2, wq=640*4096*2, wuk=512*4096*2, wuv=512*4096*2, wo=4096*640*2,
            w1=640*1728*2, w2=1728*640*2, out=2048*640*2, dbg=256, ws=WS_END)
S_WV, S_H, S_J = 48, 49, 50
def srd(n): b = SRD[n]; return f"s[{b}:{b+3}]"

def entry(names, end_label):
    t = [f"s_cmp_ge_u32 s2, 256", f"s_cbranch_scc1 {end_label}"]
    for n in names: t.append(f"s_load_dwordx2 s[{SRD[n]}:{SRD[n]+1}], s[0:1], {KARG[n]}")
    t.append("v_lshrrev_b32 v1, 6, v0")
    for n in names:
        t.append(f"s_mov_b32 s{SRD[n]+2}, {SIZE[n]}"); t.append(f"s_mov_b32 s{SRD[n]+3}, 0x20000")
    t += [f"v_readfirstlane_b32 s{S_WV}, v1",
          "v_and_b32 v0, 63, v0",
          f"s_and_b32 s{S_H}, s2, 7", f"s_lshl_b32 s{S_H}, s{S_H}, 2", "s_lshr_b32 s3, s2, 3", "s_and_b32 s3, s3, 3",
          f"s_add_u32 s{S_H}, s{S_H}, s3", f"s_lshr_b32 s{S_J}, s2, 5",
          "s_waitcnt lgkmcnt(0)"]
    return seg("\n".join(t))

def spread(stream, items, g0, step):
    g = g0
    for x in items:
        stream.add(x, g, g + 3 * step)
        if x.kind != "salu": g += step
    return g

WS_STAMP = 66 << 20 | (1 << 19) * 3
STAMPS = False
_nst = [0]
def stamp_reset(): _nst[0] = 0
def stamp():
    if not STAMPS: return []
    n = _nst[0]; _nst[0] += 1
    assert n < 8
    return seg(f"s_memtime s[{68+4*n}:{69+4*n}]\ns_memrealtime s[{70+4*n}:{71+4*n}]")
def stamp_flush(slot):
    if not STAMPS: return []
    t = ["s_waitcnt vmcnt(0) lgkmcnt(0)"] + [x.txt for x in stamp()] + ["s_waitcnt lgkmcnt(0)",
         f"s_lshl_b32 s3, s2, 2", f"s_add_u32 s3, s3, s{S_WV}", "s_lshl_b32 s3, s3, 6", f"s_add_u32 s3, s3, {WS_STAMP + slot*65536}", "v_mov_b32 v1, 0"]
    for n in range(_nst[0]):
        t += [f"v_mov_b32 v2, s{68+4*n}", f"v_mov_b32 v3, s{70+4*n}", f"buffer_store_dwordx2 v[2:3], v1, {srd('ws')}, s3 offen offset:{8*n}", "s_nop 1"]
    return seg("\n".join(t))
```

```python
import re

TRANS = ("v_exp_f32", "v_log_f32", "v_rcp_f32", "v_rsq_f32", "v_sqrt_f32", "v_sin_f32", "v_cos_f32")
_OP = re.compile(r"^-?\|?(?:abs\()?([vas])\[(\d+):(\d+)\]|^-?\|?(?:abs\()?([vas])(\d+)\b")

def regs_of(tok):
    tok = tok.strip()
    if tok == "vcc": return ["vcc"]
    if tok == "exec": return ["exec"]
    if tok == "m0": return ["m0"]
    m = _OP.match(tok)
    if not m: return []
    if m.group(1): return [f"{m.group(1)}{i}" for i in range(int(m.group(2)), int(m.group(3)) + 1)]
    return [f"{m.group(4)}{m.group(5)}"]

class Ins:
    __slots__ = ("txt", "kind", "rd", "wr", "cost", "tag", "wvm", "wlg", "nop", "srcC", "data", "vm", "lg", "n")
    def __init__(self, txt, tag=None):
        self.txt = txt.strip(); self.tag = tag
        self.wvm = None; self.wlg = None; self.nop = 0
        self.srcC = []; self.data = []; self.vm = None; self.lg = None; self.n = 1
        t = self.txt
        self.rd = []; self.wr = []; self.cost = 4
        if t.endswith(":"): self.kind = "label"; self.cost = 0; self.n = 0; return
        if t.startswith(";") or t.startswith("."): self.kind = "label"; self.cost = 0; self.n = 0; return
        sp = t.split(None, 1); op = sp[0]; rest = sp[1] if len(sp) > 1 else ""
        ops = [o.strip() for o in rest.split(",")] if rest else []
        first_tok = lambda o: o.split()[0] if o.split() else ""
        R = [regs_of(first_tok(o)) for o in ops]
        allr = lambda lst: [r for x in lst for r in x]
        if op.startswith("v_mfma"):
            self.kind = "mfma4" if "16x16x32" in op else "mfma8"
            self.wr = R[0]; self.rd = allr(R[1:]); self.srcC = R[3]; self.cost = 8
        elif op.startswith("v_cmp"):
            self.kind = "valu"; self.wr = R[0]; self.rd = allr(R[1:])
        elif op in ("v_readfirstlane_b32", "v_readlane_b32"):
            self.kind = "rl"; self.wr = R[0]; self.rd = allr(R[1:])
        elif op.startswith("v_permlane"):
            self.kind = "perm"; self.wr = allr(R); self.rd = allr(R)
        elif op.startswith("v_"):
            self.kind = "trans" if op.split("_e")[0] in TRANS or op in TRANS else "valu"
            if "row_" in t or "quad_perm" in t or "_dpp" in op: self.kind = "dpp"
            self.wr = list(R[0]); self.rd = allr(R[1:])
            if "_co_" in op: self.wr += R[1]; self.rd = allr(R[2:])
            if op.startswith(("v_fmac", "v_pk_fmac", "v_dot2c", "v_writelane")) or self.kind == "dpp": self.rd += R[0]
            if self.kind == "trans": self.cost = 8
        elif op.startswith("ds_read") or op.startswith("ds_bpermute") or op.startswith("ds_swizzle"):
            self.kind = "dsr"; self.wr = R[0]; self.rd = allr(R[1:])
        elif op.startswith("ds_write") or op.startswith("ds_add") or op.startswith("ds_or") or op.startswith("ds_max"):
            self.kind = "dsw"; self.rd = allr(R); self.data = allr(R[1:])
        elif op.startswith("buffer_load") or op.startswith("global_load"):
            if re.search(r"\blds\b", t): self.kind = "dma"; self.rd = allr(R) + ["m0"]
            else: self.kind = "vld"; self.wr = R[0]; self.rd = allr(R[1:])
        elif op.startswith("buffer_store"):
            self.kind = "vst"; self.rd = allr(R); self.data = R[0]
        elif op.startswith("global_store"):
            self.kind = "vst"; self.rd = allr(R); self.data = R[1]
        elif op.startswith("buffer_atomic"):
            if "sc0" in t: self.kind = "vld"; self.wr = R[0]; self.rd = allr(R)
            else: self.kind = "vst"; self.rd = allr(R)
        elif op in ("buffer_inv", "buffer_wbl2"):
            self.kind = "vst"
        elif op.startswith("s_load") or op.startswith("s_memtime") or op.startswith("s_memrealtime"):
            self.kind = "smem"; self.wr = R[0]; self.rd = allr(R[1:])
        elif op == "s_waitcnt":
            self.kind = "wait"
            m = re.search(r"vmcnt\((\d+)\)", t); self.vm = int(m.group(1)) if m else None
            m = re.search(r"lgkmcnt\((\d+)\)", t); self.lg = int(m.group(1)) if m else None
        elif op == "s_barrier": self.kind = "barrier"
        elif op == "s_nop": self.kind = "nop"; self.n = int(ops[0]) + 1; self.cost = 4 * self.n
        elif op in ("s_branch", "s_endpgm", "s_setpc_b64") or op.startswith("s_cbranch"):
            self.kind = "branch"; self.rd = ["scc"] if "scc" in op else (["vcc"] if "vcc" in op else [])
        elif op.startswith("s_cmp") or op.startswith("s_bitcmp"):
            self.kind = "salu"; self.wr = ["scc"]; self.rd = allr(R)
        elif op in ("s_setprio", "s_sleep"): self.kind = "salu"
        elif op.startswith("s_"):
            self.kind = "salu"; self.wr = list(R[0]); self.rd = allr(R[1:])
            if op.startswith(("s_cselect", "s_addc", "s_subb", "s_cmov")): self.rd.append("scc")
            if "saveexec" in op: self.wr.append("exec"); self.rd.append("exec")
            if not op.startswith(("s_mov", "s_mul", "s_cselect", "s_getpc", "s_cmov", "s_movk", "s_getreg")): self.wr.append("scc")
        else:
            raise ValueError("unknown instruction: " + t)
    def __repr__(self): return f"<{self.txt}>"

def seg(text, tag=None):
    out = []
    for l in text.strip("\n").split("\n"):
        l = l.split(";")[0].strip() if not l.strip().startswith(";") else ""
        if l: out.append(Ins(l, tag))
    return out

VALU = ("valu", "trans", "dpp", "perm", "rl")
VMEM = ("vld", "vst", "dma")
isv = lambda r: r[0] in "va" and r != "vcc"
iss = lambda r: r[0] == "s" and r != "scc" or r == "vcc"

def need_states(p, c):
    n = 0
    pw = set(p.wr); crd = set(c.rd); cwr = set(c.wr)
    if p.kind in VALU:
        vw = {r for r in pw if isv(r)}; sw = {r for r in pw if iss(r)}
        if vw & crd:
            if c.kind in ("mfma4", "mfma8"): n = max(n, 2)
            if c.kind in ("perm", "dpp"): n = max(n, 2)
            if c.kind == "rl": n = max(n, 1)
            if p.kind == "trans" and c.kind in VALU: n = max(n, 1)
        if sw & crd:
            if c.kind in VMEM: n = max(n, 5)
            if c.kind in VALU: n = max(n, 4 if c.kind == "rl" else 2)
            if c.kind in ("salu", "branch"): n = max(n, 4)
    if p.kind in ("mfma4", "mfma8"):
        four = p.kind == "mfma4"
        if c.kind in ("mfma4", "mfma8"):
            ab = (crd - set(c.srcC)) & pw
            if ab: n = max(n, 8 if four else 12)
            cc = set(c.srcC) & pw
            if cc and not (c.kind == p.kind and list(c.srcC) == list(p.wr)): n = max(n, 6 if four else 10)
        else:
            if c.kind in VALU + VMEM + ("dsr", "dsw") and (pw & (crd | cwr)): n = max(n, 8 if four else 12)
            if c.kind in VALU and set(p.srcC) & cwr: n = max(n, 3 if four else 7)
    if p.kind == "salu" and "m0" in pw and c.kind == "dma": n = max(n, 1)
    if p.kind == "salu" and "exec" in pw and c.kind == "dpp": n = max(n, 1)
    if p.kind == "vst" and len(p.data) >= 3 and set(p.data) & cwr:
        n = max(n, 2 if c.kind in VALU else 1)
    return n

class ProtoError(Exception): pass
OLD = 160

def resolve(paths, verbose=False):
    for path in paths:
        vmq = []; lgq = []
        clock = 0; when = {}
        for sg, step in path:
            for ins in sg:
                k = ins.kind
                if k == "label": continue
                clock = max(clock + ins.cost, when.get("mf", -99) + 16) if k == "mfma4" else clock + ins.cost
                if k == "mfma4": when["mf"] = clock
                when[id(ins)] = clock
                if k == "wait" and ins.tag and ins.tag[0] == "need":
                    want = {(nm, step + off) for nm, off in ins.tag[1]}
                    hit = -1
                    for i, (o, rs) in enumerate(vmq):
                        if o.kind in ("dma", "vst") and rs & want: hit = i
                    if hit >= 0:
                        n = min(len(vmq) - 1 - hit, 63)
                        if n < ins.vm:
                            ins.vm = n; ins.txt = re.sub(r"vmcnt\(\d+\)", f"vmcnt({n})", ins.txt)
                touched = set(ins.rd) | set(ins.wr)
                if touched:
                    for q, attr in ((vmq, "wvm"), (lgq, "wlg")):
                        hit = -1
                        for i, (o, rs) in enumerate(q):
                            if rs & touched: hit = i
                        if hit >= 0:
                            o, rs = q[hit]
                            if ((attr == "wvm" and k == "vld") or (attr == "wlg" and k == "dsr" and o.kind == "dsr")) and not any(rr & set(ins.rd) for _, rr in q):
                                continue
                            if attr == "wlg":
                                while hit + 1 < len(q) and clock - when[id(q[hit + 1][0])] >= OLD: hit += 1
                            n = len(q) - 1 - hit
                            if attr == "wlg" and any(o2.kind == "smem" for o2, _ in q): n = 0
                            lim = 63 if attr == "wvm" else 15
                            n = min(n, lim)
                            cur = getattr(ins, attr)
                            setattr(ins, attr, n if cur is None else min(cur, n))
                if ins.wvm is not None: vmq[:] = vmq[len(vmq) - ins.wvm:] if ins.wvm < len(vmq) and ins.wvm > 0 else ([] if ins.wvm == 0 else vmq)
                if ins.wlg is not None: lgq[:] = lgq[len(lgq) - ins.wlg:] if ins.wlg < len(lgq) and ins.wlg > 0 else ([] if ins.wlg == 0 else lgq)
                if k == "wait":
                    if ins.vm is not None: vmq[:] = [] if ins.vm == 0 else vmq[-ins.vm:]
                    if ins.lg is not None: lgq[:] = [] if ins.lg == 0 else lgq[-ins.lg:]
                if k in VMEM:
                    rs = set(ins.wr)
                    if ins.tag and ins.tag[0] == "w": rs.add((ins.tag[1], step + ins.tag[3]))
                    vmq.append((ins, rs))
                if k in ("dsr", "dsw", "smem"): lgq.append((ins, set(ins.wr)))
    for path in paths:
        lastw = None
        for sg, step in path:
            for ins in sg:
                if "scc" in ins.rd and not ins.txt.startswith(("s_addc", "s_subb")):
                    assert lastw is not None and lastw.txt.startswith(("s_cmp", "s_bitcmp")), f"SCC clobbered by {lastw} before {ins}"
                if "scc" in ins.wr: lastw = ins
    added = 0
    for path in paths:
        hist = []
        pos = 0
        for sg, step in path:
            for ins in sg:
                if ins.kind == "label": continue
                if ins.wvm is not None or ins.wlg is not None: pos += 1
                pos += ins.nop
                short = 0
                for p, pp in hist[-24:]:
                    d = pos - pp - 1
                    if d < 20:
                        nd = need_states(p, ins)
                        if nd > d: short = max(short, nd - d)
                if short:
                    ins.nop += short; pos += short; added += 1
                    if verbose: print("nop", short, "before", ins.txt)
                hist.append((ins, pos + ins.n - 1)); pos += ins.n
    return added

def check_lds(paths):
    for path in paths:
        vmq = []; lgq = []
        st = {}
        def retire(q, n, f):
            while len(q) > n:
                f(q.pop(0))
        def vm_done(x):
            if x: x["pw"] -= 1
        def lg_done(x):
            if x:
                s, kind = x
                s["pr" if kind == "r" else "pw"] -= 1
        for sg, step in path:
            for ins in sg:
                k = ins.kind
                if k == "label": continue
                for n in (ins.wvm, ins.vm if k == "wait" else None):
                    if n is not None: retire(vmq, n, vm_done)
                for n in (ins.wlg, ins.lg if k == "wait" else None):
                    if n is not None: retire(lgq, n, lg_done)
                if k == "barrier":
                    for s in st.values():
                        if s["pw"] == 0: s["vis"] = True
                        if s["pr"] == 0: s["free"] = True
                ent = None
                if ins.tag and k in ("dma", "dsr", "dsw"):
                    rw, name, slot, off = ins.tag[:4]
                    gen = step + off
                    slot = slot(gen) if callable(slot) else slot
                    key = (name, slot)
                    s = st.get(key)
                    if rw == "w":
                        if s is None or s["gen"] != gen:
                            if s is not None and not (s["free"] and s["pr"] == 0):
                                raise ProtoError(f"WAR: write gen {gen} into {key} while gen {s['gen']} not released: {ins.txt}")
                            s = st[key] = dict(gen=gen, pw=0, vis=False, pr=0, free=True)
                        s["pw"] += 1; s["vis"] = False
                        ent = s if k == "dma" else (s, "w")
                    else:
                        if s is None or s["gen"] != gen:
                            if len(ins.tag) > 4 and ins.tag[4] == "junk_ok": pass
                            else: raise ProtoError(f"read of {key} gen {gen} but holds {s and s['gen']}: {ins.txt}")
                        elif not s["vis"]:
                            raise ProtoError(f"RAW: read of {key} gen {gen} before visible: {ins.txt}")
                        if s is not None:
                            s["pr"] += 1; s["free"] = False
                            ent = (s, "r")
                if k in VMEM: vmq.append(ent if k == "dma" else None)
                if k in ("dsr", "dsw", "smem"): lgq.append(ent)

def render(segment):
    out = []
    for ins in segment:
        if ins.kind == "label":
            out.append(ins.txt); continue
        w = []
        if ins.wvm is not None: w.append(f"vmcnt({ins.wvm})")
        if ins.wlg is not None: w.append(f"lgkmcnt({ins.wlg})")
        if w: out.append("s_waitcnt " + " ".join(w))
        n = ins.nop
        while n > 0:
            m = min(n, 16); out.append(f"s_nop {m-1}"); n -= m
        out.append(ins.txt)
    return "\n".join(out) + "\n"

class Stream:
    def __init__(self, name, prio=0): self.name = name; self.items = []; self.prio = prio
    def add(self, ins, rel=-1, dl=10**9):
        if isinstance(ins, str): ins = Ins(ins)
        self.items.append((ins, rel, dl)); return ins

def place(nmain, streams, cap=8, period=None, reserve=None):
    its = []
    for s in streams:
        dls = [d for _, _, d in s.items]
        for i in range(len(dls) - 2, -1, -1): dls[i] = min(dls[i], dls[i + 1])
        its.append([(ins, rel, dls[i]) for i, (ins, rel, _) in enumerate(s.items)])
    ptr = [0] * len(its)
    used = dict(reserve or {})
    gaps = {}
    g = -1
    last = max([nmain] + [min(d, 10**6) for it in its for _, _, d in it if d < 10**9] + [r for it in its for _, r, _ in it])
    total = sum(len(x) for x in its); done = 0
    over = 0
    while done < total:
        key = g % period if period else g
        while True:
            best = None
            for si, it in enumerate(its):
                if ptr[si] < len(it):
                    ins, rel, dl = it[ptr[si]]
                    if rel <= g:
                        fits = used.get(key, 0) + ins.cost <= cap or (g == -1 and not period) or (not period and g >= nmain - 1)
                        if fits or dl <= g:
                            kx = (dl, -streams[si].prio, si)
                            if best is None or kx < best[0]: best = (kx, si, fits)
            if best is None: break
            si = best[1]; ins = its[si][ptr[si]][0]
            if not best[2]: over += 1
            gaps.setdefault(g, []).append(ins); used[key] = used.get(key, 0) + ins.cost
            ptr[si] += 1; done += 1
        g += 1
        if g > last + 10000: raise RuntimeError("placement did not finish")
    return gaps, over

def weave(main, gaps, lo=-1, hi=None):
    out = list(gaps.get(-1, [])) if lo <= -1 else []
    for i, m in enumerate(main):
        if m is not None: out.append(m)
        out.extend(gaps.get(i, []))
    mx = max(list(gaps.keys()) + [0])
    for g in range(len(main), mx + 1): out.extend(gaps.get(g, []))
    return out

def R(kind, base, n=4): return f"{kind}[{base}:{base+n-1}]" if n > 1 else f"{kind}{base}"
def reg(r, n=4):
    return R(r[0], r[1], n)
def mfma(d, a, b, c=None):
    cs = reg(d) if c is None else (c if isinstance(c, str) else reg(c))
    return Ins(f"v_mfma_f32_16x16x32_bf16 {reg(d)}, {reg(a)}, {reg(b)}, {cs}")

def need(names, lg=None):
    return Ins("s_waitcnt vmcnt(63)" + (f" lgkmcnt({lg})" if lg is not None else ""), tag=("need", names))
```

```python
from common import *
import common, ph_qf as qf, ph_at as at
def kernel_qa(name):
    end = f"L_end_{name}"
    stamp_reset()
    k0, v0, k1 = at.first_dma()
    head = [stamp(), entry(["ws", "wq", "w1", "w2", "wo"], end), qf.qf_setup(), at.at_setup_dma(), seg(f"s_cmp_ge_u32 s{S_H}, 27\ns_cbranch_scc1 L_{name}_nof")]
    st1 = stamp(); st2 = stamp(); st3 = stamp()
    var = {}
    for ffn in (True, False):
        k0, v0, k1 = at.first_dma()
        m, over = qf.qf_main(ffn, {7: k0 + v0, 8: k1})
        print("qf ffn", ffn, "overfull", over)
        cp = lambda s: [Ins(x.txt) for x in s]
        var[ffn] = [qf.qf_prologue(ffn), m[:2], cp(st1), m[2:], cp(st2), qf.qf_epilogue(ffn)]
    layF = var[True] + [seg(f"s_branch L_{name}_join")]
    layN = [seg(f"L_{name}_nof:")] + var[False]
    join = [seg(f"L_{name}_join:"), at.at_setup(), [need([("K", 0)], lg=0), Ins("s_barrier")], qf.q_readback(), st3]
    asegs, apath = at.attention(name)
    fin = [stamp(), stamp_flush(1), seg(f"{end}:\ns_endpgm")]
    paths = []
    for ffn in (True, False):
        for j in (0, 1, 2, 3, 7):
            for par in (0, 1):
                paths.append([(s, 0) for s in head + (layF if ffn else layN) + join] + apath(j, par) + [(s, 0) for s in fin])
    n = resolve(paths, verbose=False); n2 = resolve(paths); check_lds(paths)
    segs = head + layF + layN + join + asegs + fin
    print(name, "nops", n, n2, "instrs", sum(len(s) for s in segs))
    return "".join(render(s) for s in segs)
```

```python
from common import *
import common
from ph_qf import S_PAR, S_HALF, S_B1, S_B2
Q = lambda blk, i, ds: ("a", 64 * blk + 16 * i + 4 * ds)
O = lambda i, db: ("a", 128 + 32 * i + 4 * db)
ONES = ("v", 8); MASK = lambda i: ("v", 12 + 4 * (i & 1))
L = lambda i: ("v", 20 + 4 * i)
S = lambda i, kb: ("v", 36 + 16 * (i & 1) + 4 * kb)
P = lambda i, kk: ("v", 68 + 8 * i + 4 * kk)
K = lambda kb, ds: ("v", 100 + 16 * kb + 4 * ds)
V = lambda db, kk: ("v", 164 + 8 * db + 4 * kk)
TMP = 228
LDS_X = 131072
N = 136
par2 = lambda g: g & 1

def at_setup_dma():
    return seg(f"""
    s_lshl_b32 s51, s{S_H}, 19
    s_lshl_b32 s67, s{S_WV}, 13
    s_add_u32 s51, s51, s67
    v_add_u32 v28, s51, v1
    v_add_u32 v29, 4096, v28
    """)
def dma_tile(name, vbase, m0s, m0c, soff, gen):
    out = []
    for grp in range(2):
        out.append(Ins(f"s_add_u32 m0, {m0s}, {m0c + grp*4096}"))
        for n in range(4):
            out.append(Ins(f"buffer_load_dwordx4 v{vbase+grp}, {srd('ws')}, {soff} offen offset:{n*1024} lds", tag=("w", name, par2, gen)))
    return out
def first_dma():
    k0 = [Ins(f"s_mov_b32 s61, {WS_K}")] + dma_tile("K", 28, "s67", 0, "s61", 0)
    v0 = [Ins(f"s_mov_b32 s61, {WS_V}")] + dma_tile("V", 28, "s67", 65536, "s61", 0)
    k1 = seg(f"s_cmp_eq_u32 s{S_B1}, 0\ns_cselect_b32 s62, 0, 0x8000\ns_add_u32 s62, s62, {WS_K}") + dma_tile("K", 28, "s67", 32768, "s62", 1)
    return k0, v0, k1

def at_setup():
    t = f"""
    v_mov_b32 v4, v28
    v_mov_b32 v5, v29
    s_mov_b32 s58, s62
    s_mov_b32 s60, 2
    s_add_u32 s61, s{S_B1}, 1
    s_mov_b32 s56, s67
    s_add_u32 s57, s67, {65536+32768}
    s_mov_b64 s[66:67], 0
    v_and_b32 v6, 15, v0
    v_lshrrev_b32 v7, 4, v0
    s_lshl_b32 s51, s{S_PAR}, 14
    v_add_u32 v2, s51, v1
    v_cmp_eq_u32 vcc, 0, v6
    v_mov_b32 v8, 0x3f803f80
    v_cndmask_b32 v8, 0, v8, vcc
    v_mov_b32 v9, v8
    v_mov_b32 v10, v8
    v_mov_b32 v11, v8
    v_lshlrev_b32 v7, 2, v7
    v_sub_u32 v7, v6, v7
    s_sub_i32 s51, s{S_PAR}, s{S_HALF}
    s_lshl_b32 s51, s51, 4
    s_add_i32 s52, s{S_PAR}, s{S_HALF}
    s_sub_i32 s52, s52, 1
    s_lshl_b32 s52, s52, 4
    v_mov_b32 v6, 0xf149f2ca
    """
    for pari in range(2):
        for r in range(4):
            t += f"s_add_i32 s53, s{51+pari}, {r}\nv_cmp_le_i32 vcc, s53, v7\nv_cndmask_b32 v{12+4*pari+r}, v6, 0, vcc\n"
    return seg(t)
def set_v3(): return seg("v_add_u32 v3, 0x10000, v2")

def rd_K(kb, ds, off, junk=False): return Ins(f"ds_read_b128 {reg(K(kb,ds))}, v2 offset:{(kb*4+ds)*1024}", tag=("r", "K", par2, off))
def rd_V(db, kk, off): return Ins(f"ds_read_b128 {reg(V(db,kk))}, v3 offset:{(db*2+kk)*1024}", tag=("r", "V", par2, off))

def plan():
    small = {g: 2 for g in range(N) if (g % 34) % 2 == 0 or g % 34 == 33}
    pos = []
    def put(key, g):
        while small.get(g % N, 0) == 0: g += 1
        small[g % N] -= 1; pos.append((g, key)); return g
    put(("barA_w",), 100); put(("barA",), 100)
    g = 102
    for db in range(8):
        for kk in range(2): g = put(("rv", db, kk), max(g, 102 + 2 * db + kk))
    put(("xv",), g)
    g = 120; n = 0
    for kb in range(4):
        for ds in range(4): g = put(("rk", kb, ds), max(g, 120 + 4 * kb + ds))
    gk = put(("xk",), g)
    gb = gk + 7
    gb = put(("barB_w",), gb); put(("barB",), gb)
    ex = {}
    for i in range(4):
        gg = [34 * i + 27, 34 * i + 29, 34 * i + 31] + [34 * (i + 1) + 1 + 2 * x for x in range(13)]
        for n in range(16):
            pos.append((gg[n], ("e", i, n >> 2, n & 3))); ex[(i, n)] = gg[n]
    g = gb - N + 2
    dm = [("s", x) for x in range(7)]
    for x in dm: g = put(x, g)
    for d in range(20):
        g = put(("d", d), g + (0 if d % 5 == 0 else 3))
    g = put(("s", 7), g + 1); g = put(("s", 8), g); g = put(("loop0",), g + 1); g = put(("loop1",), g)
    assert g < 98, g
    last = -1
    for i in range(4):
        for n in range(1, 16, 2):
            last = put(("c", i, n >> 2, (n >> 1) & 1), max(ex[(i, n)] + 1, last))
    return pos
PLAN = plan()

def step(blk_pv, blk_qk, pv="reg", qk="reg", first=False, prev="reg", carry_k=True, spill_k=True, rdv=True, rdk=True, dma=True, barB=True, loop=None):
    main = []
    nkb = lambda i: (i + 1 if qk == "diag" else 4)
    for i in range(4):
        kks = (0,) if (pv == "diag" and i < 2) else (0, 1)
        for db in range(8):
            for kk in range(2):
                main.append(mfma(O(i, db), V(db, kk), P(i, kk), "0" if first and kk == 0 else None) if pv and kk in kks else None)
        for kk in range(2):
            main.append(mfma(L(i), ONES, P(i, kk), "0" if first and kk == 0 else None) if pv and kk in kks else None)
        for kb in range(4):
            for ds in range(4):
                if qk and kb < nkb(i):
                    c = None if ds else (MASK(i) if (qk == "diag" and kb == i) else "0")
                    main.append(mfma(S(i, kb), K(kb, ds), Q(blk_qk, i, ds), c))
                else: main.append(None)
    dmas = dma_tile("V", 4, "s57", 0, "s59", 2) + dma_tile("K", 4, "s56", 0, "s58", 3)
    sal = [f"s_add_u32 s59, s58, {WS_V-WS_K}", "s_add_u32 s58, s58, 32768", "s_cmp_eq_u32 s60, s61", f"s_cselect_b32 s58, {WS_K}, s58",
           "s_cmp_gt_u32 s60, 16", f"s_cselect_b32 s58, {OOB}, s58", "s_add_u32 s60, s60, 1", "s_xor_b32 s56, s56, 0x8000", "s_xor_b32 s57, s57, 0x8000"]
    gaps = {}; tail = []
    def mk(key, cur):
        k = key[0]; o = 0 if cur else -1
        if k == "barA_w": return need([("V", 1), ("K", 2)]) if (rdv or rdk) else None
        if k == "barA": return Ins("s_barrier") if (rdv or rdk) else None
        if k == "rv": return rd_V(key[1], key[2], 1 + o) if rdv else None
        if k == "xv": return Ins("v_xor_b32 v3, 0x8000, v3")
        if k == "rk": return rd_K(key[1], key[2], 2 + o) if (rdk if cur else carry_k) else None
        if k == "xk": return Ins("v_xor_b32 v2, 0x8000, v2") if (True if cur else carry_k) else None
        if k == "barB_w": return Ins("s_waitcnt lgkmcnt(0)") if barB else None
        if k == "barB": return Ins("s_barrier") if barB else None
        if k == "e":
            i, kb, r = key[1:]
            md = qk if cur else prev
            if md and (md == "reg" or kb <= i):
                x = S(i, kb)[1] + r; return Ins(f"v_exp_f32 v{x}, v{x}")
            return None
        if k == "c":
            i, kb, hf = key[1:]
            d = P(i, kb >> 1)[1] + 2 * (kb & 1) + hf; x = S(i, kb)[1] + 2 * hf
            md = qk if cur else prev
            if md and (md == "reg" or kb <= i): return Ins(f"v_cvt_pk_bf16_f32 v{d}, v{x}, v{x+1}")
            if md == "diag" and (i, kb) in ((0, 1), (2, 3)): return Ins(f"v_mov_b32 v{d}, 0")
            return None
        if k == "s": return Ins(sal[key[1]]) if dma else None
        if k == "d": return dmas[key[1]] if dma else None
        if k == "loop0": return Ins("s_sub_u32 s62, s62, 1") if loop else None
        if k == "loop1": return Ins("s_cmp_lg_u32 s62, 0") if loop else None
        raise KeyError(key)
    for g, key in sorted(PLAN, key=lambda x: (x[0] % N, x[0] < N)):
        if g < N: x = mk(key, True)
        else: x = mk(key, False)
        if x is not None: gaps.setdefault(g % N, []).append(x)
    if not spill_k:
        for g, key in sorted(PLAN):
            if g >= N and key[0] in ("rk", "xk"):
                x = mk(key, True)
                if x is not None: tail.append(x)
    out = weave(main, gaps) + tail
    if loop:
        out = [Ins(f"{loop}:")] + out + seg(f"s_cbranch_scc1 {loop}")
    return out

def k0_read():
    return [rd_K(kb, ds, 1) for kb in range(4) for ds in range(4)] + [Ins("v_xor_b32 v2, 0x8000, v2")]

def finalize(blk, par, sc1=""):
    keep = (2 * par, 2 * par + 1); send = (2 - 2 * par, 3 - 2 * par)
    T = TMP
    vX, vV, vL = T, T + 1, T + 2
    t = [f"s_lshl_b32 s51, s{S_WV}, 13", f"s_add_u32 s52, s51, {LDS_X}", f"v_add_u32 v{vX}, s52, v1",
         f"s_sub_u32 s52, s51, {par*16384}", f"v_xor_b32 v{vV}, 0x8000, v3", f"v_add_u32 v{vV}, s52, v{vV}",
         f"v_and_b32 v{vL}, 0x8000, v2", f"v_xor_b32 v{vL}, 0x8000, v{vL}", f"v_lshrrev_b32 v{T+3}, 2, v1", f"s_lshl_b32 s52, s{S_WV}, 10",
         f"v_add3_u32 v{T+3}, v{vL}, v{T+3}, s52",
         f"v_and_b32 v{T+4}, 63, v{T+3}", f"v_add3_u32 v{vL}, v{vL}, v{T+4}, s52",
         "s_waitcnt lgkmcnt(0)", "s_barrier"]
    for n, i in enumerate(send):
        for db in range(8): t.append(f"ds_write_b128 v{vX+n}, {reg(O(i,db))} offset:{db*1024}")
    for i in range(4): t.append(f"ds_write_b32 v{T+3}, v{L(i)[1]} offset:{i*256}")
    t += [f"v_xor_b32 v{vX}, 0x2000, v{vX}", f"v_xor_b32 v{vV}, 0x2000, v{vV}", f"v_xor_b32 v{T+4}, 0x400, v{vL}",
          f"s_lshl_b32 s51, s{S_B2 if blk else S_B1}, 3", f"s_add_u32 s51, s51, {4*par}",
          f"s_add_u32 s52, s51, s{S_HALF}", f"s_sub_u32 s53, s51, s{S_HALF}", "s_add_u32 s53, s53, 3",
          f"s_mul_i32 s52, s52, {182*1024}", f"s_mul_i32 s53, s53, {182*1024}", f"s_lshl_b32 s51, s{S_H}, 12", f"s_add_u32 s51, s51, {WS_CH + 54*1024}",
          "s_add_u32 s52, s52, s51", "s_add_u32 s53, s53, s51",
          "s_waitcnt lgkmcnt(0)", "s_barrier"]
    l0 = T + 5
    for n, i in enumerate(keep):
        t += [f"ds_read_b32 v{l0+2*n}, v{vL} offset:{i*256}", f"ds_read_b32 v{l0+2*n+1}, v{T+4} offset:{i*256}"]
    B = [T + 10 + 2, L(0)[1]]
    U = [T + 20, L(2)[1]]
    jobs = [(n, i, m) for n, i in enumerate(keep) for m in range(4)]
    def rd(jn):
        n, i, m = jobs[jn]; b = B[jn & 1]
        return [f"ds_read_b128 v[{b}:{b+3}], v{vX+n} offset:{2*m*1024}", f"ds_read_b128 v[{b+4}:{b+7}], v{vX+n} offset:{(2*m+1)*1024}"]
    t += rd(0)
    for n in range(2):
        a = l0 + 2 * n
        t += [f"v_add_f32 v{a}, v{a}, v{a+1}", f"v_cmp_nle_f32 vcc, 0x21800000, v{a}", "s_or_b64 s[66:67], s[66:67], vcc",
              f"v_cmp_nge_f32 vcc, 0x5d800000, v{a}", "s_or_b64 s[66:67], s[66:67], vcc", f"v_rcp_f32 v{a}, v{a}"]
    for jn, (n, i, m) in enumerate(jobs):
        b, u = B[jn & 1], U[jn & 1]; r = l0 + 2 * n
        t += [f"v_accvgpr_read_b32 v{u+e}, a{O(i,2*m)[1]+e}" for e in range(8)]
        if jn + 1 < 8: t += rd(jn + 1)
        t += [f"v_pk_add_f32 v[{u+e}:{u+e+1}], v[{u+e}:{u+e+1}], v[{b+e}:{b+e+1}]" for e in range(0, 8, 2)]
        t += [f"v_mul_f32 v{u+e}, v{r}, v{u+e}" for e in range(8)]
        t += [f"v_cvt_pk_bf16_f32 v{u+e}, v{u+2*e}, v{u+2*e+1}" for e in range(4)]
        t += [f"buffer_store_dwordx4 v[{u}:{u+3}], v1, {srd('ws')}, s{52+n} offen offset:{m*1024} {sc1}"]
    return seg("\n".join(t))

def attention(nm, sc1=""):
    lab = lambda x: f"L_{nm}_{x}"
    sg = {}
    sg["k0"] = set_v3() + k0_read() + seg(f"s_cmp_eq_u32 s{S_B1}, 0\ns_cbranch_scc1 {lab('prod')}")
    sg["pro"] = step(0, 0, pv=None, prev=None, carry_k=False) + seg(f"s_cmp_eq_u32 s{S_B1}, 1\ns_cbranch_scc1 {lab('b1fd')}")
    sg["b1f"] = step(0, 0, first=True) + seg(f"s_sub_u32 s62, s{S_B1}, 2\ns_cmp_eq_u32 s62, 0\ns_cbranch_scc1 {lab('b1d')}")
    sg["b1"] = step(0, 0, loop=lab("b1"))
    sg["b1d"] = seg(lab("b1d") + ":") + step(0, 0, qk="diag")
    sg["x"] = seg(lab("x") + ":") + step(0, 1, pv="diag", prev="diag", spill_k=False)
    sg["f1b"] = seg(f"{lab('f1')}:\ns_cmp_eq_u32 s{S_PAR}, 1\ns_cbranch_scc1 {lab('f11')}")
    sg["f10"] = finalize(0, 0, sc1) + seg(f"s_branch {lab('b2f')}")
    sg["f11"] = seg(lab("f11") + ":") + finalize(0, 1, sc1)
    sg["b2f"] = seg(lab("b2f") + ":") + step(1, 1, first=True, carry_k=False) + seg(f"s_sub_u32 s62, s{S_B2}, 2")
    sg["b2"] = step(1, 1, loop=lab("b2"))
    sg["b2d"] = step(1, 1, qk="diag", rdk=False, dma=False, barB=False)
    sg["tail"] = step(1, 1, pv="diag", prev="diag", qk=None, carry_k=False, rdv=False, rdk=False, dma=False, barB=False) + seg(f"v_xor_b32 v2, 0x8000, v2\ns_cmp_eq_u32 s{S_PAR}, 1\ns_cbranch_scc1 {lab('f21')}")
    sg["f20"] = finalize(1, 0, sc1) + seg(f"s_branch {lab('done')}")
    sg["f21"] = seg(lab("f21") + ":") + finalize(1, 1, sc1) + seg(f"s_branch {lab('done')}")
    sg["prod"] = seg(lab("prod") + ":") + step(0, 0, pv=None, qk="diag", prev=None, carry_k=False)
    sg["x0"] = step(0, 1, pv="diag", prev="diag", first=True, spill_k=False) + seg(f"s_branch {lab('f1')}")
    sg["b1fd"] = seg(lab("b1fd") + ":") + step(0, 0, qk="diag", first=True) + seg(f"s_branch {lab('x')}")
    sg["done"] = seg(lab("done") + ":")
    order = ["k0", "pro", "b1f", "b1", "b1d", "x", "f1b", "f10", "f11", "b2f", "b2", "b2d", "tail", "f20", "f21", "prod", "x0", "b1fd", "done"]
    def path(j, par):
        p = [("k0", -1)]
        if j == 0: p += [("prod", -1), ("x0", 0)]
        elif j == 1: p += [("pro", -1), ("b1fd", 0), ("x", 1)]
        else: p += [("pro", -1), ("b1f", 0)] + [("b1", s) for s in range(1, j - 1)] + [("b1d", j - 1), ("x", j)]
        p += [("f1b", j), (f"f1{par}", j), ("b2f", j + 1)] + [("b2", s) for s in range(j + 2, 15)] + [("b2d", 15), ("tail", 16), (f"f2{par}", 16), ("done", 16)]
        return [(sg[n], s) for n, s in p]
    return [sg[n] for n in order], path
```

```python
from common import *
import common
NS = 23; NF = 7
accF = lambda mb, qb: ("a", 16 * mb + 4 * qb)
accS = lambda mb, qb: ("a", 80 + 16 * mb + 4 * qb)
FA = lambda st, mb, kk: ("v", 16 + 72 * st + 8 * mb + 4 * kk)
FB = lambda st, qb, kk: ("v", 56 + 72 * st + 8 * qb + 4 * kk)
XR = 232
RB = 182 * 1024

def f_setup():
    return seg(f"""
    v_lshlrev_b32 v1, 4, v0
    s_and_b32 s51, s2, 3
    s_lshl_b32 s51, s51, 5
    s_lshr_b32 s52, s2, 3
    s_and_b32 s53, s52, 7
    s_lshl_b32 s53, s53, 2
    s_add_u32 s54, s51, s53
    s_lshr_b32 s52, s52, 3
    s_mul_i32 s52, s52, 5
    s_lshr_b32 s51, s2, 2
    s_and_b32 s51, s51, 1
    s_mul_i32 s51, s51, 20
    s_add_u32 s55, s51, s52
    s_mul_i32 s51, s54, {RB}
    s_lshl_b32 s52, s{S_WV}, 11
    s_add_u32 s51, s51, s52
    v_add_u32 v2, s51, v1
    v_add_u32 v3, {RB}, v2
    v_add_u32 v4, {2*RB}, v2
    v_add_u32 v5, {3*RB}, v2
    s_lshl_b32 s51, s55, 10
    s_mul_i32 s52, s{S_WV}, 81920
    s_add_u32 s51, s51, s52
    v_add_u32 v6, s51, v1
    v_add_u32 v7, 40960, v6
    v_add_u32 v8, 4096, v6
    v_add_u32 v9, 4096, v7
    s_add_u32 s51, s54, s{S_WV}
    s_lshl_b32 s51, s51, 4
    v_and_b32 v10, 15, v0
    v_add_u32 v10, s51, v10
    s_movk_i32 s52, 1280
    v_mul_lo_u32 v10, v10, s52
    v_lshrrev_b32 v11, 4, v0
    v_lshl_add_u32 v10, v11, 3, v10
    s_lshl_b32 s51, s55, 5
    v_add_u32 v10, s51, v10
    s_mul_i32 s51, s{S_WV}, 5120
    v_add_u32 v11, s51, v1
    s_mul_i32 s51, s{S_WV}, 20480
    v_add_u32 v12, s51, v1
    v_add_u32 v13, 81920, v11
    v_add_u32 v14, 81920, v12
    v_add_u32 v15, 40960, v11
    v_add_u32 v242, 40960, v13
    """)
def pair0(n): return 4 * n if n < NF else 27 + 4 * (n - NF)
def soffs(n):
    t = [f"s_mov_b32 s{56+2*(n&1)}, {WS_WF + pair0(n)*81920}", f"s_mov_b32 s{57+2*(n&1)}, {WS_CH + pair0(n)*2048}"]
    if n == NF - 1:
        t += [f"s_cmp_eq_u32 s{S_WV}, 3", f"s_cselect_b32 s{56+2*(n&1)}, {OOB}, s{56+2*(n&1)}", f"s_cselect_b32 s{57+2*(n&1)}, {OOB}, s{57+2*(n&1)}"]
    return seg("\n".join(t))
def ldA(n, mb, kk): return Ins(f"buffer_load_dwordx4 {reg(FA(n%3,mb,kk))}, v{6+kk+(2 if mb==4 else 0)}, {srd('ws')}, s{56+2*(n&1)} offen offset:{(mb&3)*1024}")
def ldB(n, qb, kk): return Ins(f"buffer_load_dwordx4 {reg(FB(n%3,qb,kk))}, v{2+qb}, {srd('ws')}, s{57+2*(n&1)} offen offset:{kk*1024}")
def f_prologue():
    out = []
    for n in range(3):
        out += soffs(n)
        out += [ldA(n, 0, 0), ldB(n, 0, 0), ldA(n, 0, 1), ldB(n, 0, 1)] + [ldB(n, qb, kk) for qb in range(1, 4) for kk in range(2)] + [ldA(n, mb, kk) for mb in range(1, 5) for kk in range(2)]
        if n == 0: out += [Ins(f"buffer_load_dwordx2 v[{XR+2*mb}:{XR+2*mb+1}], v10, {srd('x')}, 0 offen offset:{mb*32}") for mb in range(5)]
    return out
def wr(acc, base, mb, qb, nm): return Ins(f"ds_write_b128 v{base[qb>>1]}, {reg(acc(mb,qb))} offset:{(qb&1)*20480 + mb*1024}", tag=("w", nm, 0, 0))
def f_main():
    main = []
    ld = Stream("ld", 1); wf = Stream("wf", 0)
    for n in range(NS):
        acc = accF if n < NF else accS; b = 40 * n
        for mb in range(5):
            for qb in range(4):
                for kk in range(2):
                    main.append(mfma(acc(mb, qb), FA(n % 3, mb, kk), FB(n % 3, qb, kk), "0" if (n in (0, NF) and kk == 0) else None))
        if n + 3 < NS:
            for x in soffs(n + 3): ld.add(x, b, b + 6)
            for mb in range(4):
                for kk in range(2): ld.add(ldA(n + 3, mb, kk), b + 8 * mb + 6 + kk, b + 8 * mb + 12 + kk)
            for qb in range(4):
                for kk in range(2):
                    ld.add(ldB(n + 3, qb, kk), b + 32 + 2 * qb + kk, b + 44)
            for kk in range(2): ld.add(ldA(n + 3, 4, kk), b + 38 + kk, b + 46)
        if n in (NF - 1, NS - 1):
            for mb in range(5):
                for qb in range(4):
                    g = b + 8 * mb + 2 * qb + 1 + 6
                    wf.add(wr(acc, (11, 15) if n < NF else (13, 242), mb, qb, "FX" if n < NF else "SX"), g, g + 40)
    gaps, over = place(len(main), [ld, wf])
    return weave(main, gaps), over
def f_epilogue():
    t = seg("s_waitcnt lgkmcnt(0)\ns_barrier")
    F0, S0 = 16, 96
    for base, r0, nm in ((12, F0, "FX"), (14, S0, "SX")):
        for mb in range(5):
            for src in range(4):
                r = r0 + 16 * mb + 4 * src
                t.append(Ins(f"ds_read_b128 v[{r}:{r+3}], v{base} offset:{src*5120 + mb*1024}", tag=("r", nm, 0, 0)))
    u = []
    T = 176
    for mb in range(5):
        r = F0 + 16 * mb
        for a, b in ((0, 4), (8, 12), (0, 8)):
            u += [f"v_pk_add_f32 v[{r+a+e}:{r+a+e+1}], v[{r+a+e}:{r+a+e+1}], v[{r+b+e}:{r+b+e+1}]" for e in (0, 2)]
        u += [f"v_mul_f32 v{r+4+e}, 0xbfb8aa3b, v{r+e}" for e in range(4)]
        u += [f"v_exp_f32 v{r+4+e}, v{r+4+e}" for e in range(4)]
        u += [f"v_add_f32 v{r+4+e}, 1.0, v{r+4+e}" for e in range(4)]
        u += [f"v_rcp_f32 v{r+4+e}, v{r+4+e}" for e in range(4)]
        u += [f"v_lshlrev_b32 v{r+8}, 16, v{XR+2*mb}", f"v_and_b32 v{r+9}, 0xffff0000, v{XR+2*mb}", f"v_lshlrev_b32 v{r+10}, 16, v{XR+2*mb+1}", f"v_and_b32 v{r+11}, 0xffff0000, v{XR+2*mb+1}"]
        u += [f"v_mul_f32 v{r+e}, v{r+e}, v{r+4+e}" for e in range(4)]
    for mb in range(5):
        r = S0 + 16 * mb; f = F0 + 16 * mb
        for a, b in ((0, 4), (8, 12), (0, 8)):
            u += [f"v_pk_add_f32 v[{r+a+e}:{r+a+e+1}], v[{r+a+e}:{r+a+e+1}], v[{r+b+e}:{r+b+e+1}]" for e in (0, 2)]
        u += [f"v_fmac_f32 v{f+8+e}, v{r+e}, v{f+e}" for e in range(4)]
        u += [f"v_cvt_pk_bf16_f32 v{f+8}, v{f+8}, v{f+9}", f"v_cvt_pk_bf16_f32 v{f+9}, v{f+10}, v{f+11}",
              f"buffer_store_dwordx2 v[{f+8}:{f+9}], v10, {srd('out')}, 0 offen offset:{mb*32}"]
    return t + seg("\n".join(u))

def kernel_f(name):
    end = f"L_end_{name}"
    stamp_reset()
    m, over = f_main()
    segs = [stamp(), entry(["ws", "x", "out"], end), f_setup(), f_prologue(), stamp(), m[:280*2], stamp(), m[280*2:], stamp(), f_epilogue(), stamp(), stamp_flush(2), seg(f"{end}:\ns_endpgm")]
    path = [(s, 0) for s in segs]
    n = resolve([path]); check_lds([path])
    print(name, "overfull", over, "nops", n, "instrs", sum(len(s) for s in segs))
    return "".join(render(s) for s in segs)
```

```python
from common import *
import common
LDS_A = 0; LDS_W = 65536; LDS_X = 131072
def acc_kv(i, j):
    if j == 7 and i >= 4: return ("a", 4 * (i - 4))
    n = j * 8 + i
    return ("v", 16 + 4 * n)
AF = lambda i, kk: ("a", 16 + 4 * (2 * i + kk))
WF = lambda st, kk: ("a", 80 + 8 * st + 4 * kk)

def ln_loads():
    return seg(f"""
    v_and_b32 v16, 7, v0
    v_lshrrev_b32 v17, 3, v0
    s_lshl_b32 s51, s2, 3
    v_add_u32 v18, s51, v16
    s_movk_i32 s52, 1280
    v_mul_lo_u32 v18, v18, s52
    s_mul_i32 s53, s{S_WV}, 20
    v_add_u32 v19, s53, v17
    v_lshl_add_u32 v18, v19, 4, v18
    v_cmp_gt_u32 vcc, 4, v17
    v_add_u32 v32, 256, v18
    v_mov_b32 v33, {OOB}
    v_cndmask_b32 v32, v33, v32, vcc
    buffer_load_dwordx4 v[20:23], v18, {srd('x')}, 0 offen
    buffer_load_dwordx4 v[24:27], v18, {srd('x')}, 0 offen offset:128
    buffer_load_dwordx4 v[28:31], v32, {srd('x')}, 0 offen
    """)
def ln_compute(sc1=""):
    t = []
    for d in range(12):
        t.append(f"v_lshlrev_b32 v{40+2*d}, 16, v{20+d}")
        t.append(f"v_and_b32 v{41+2*d}, 0xffff0000, v{20+d}")
    t += ["v_add_f32 v34, v40, v41", "v_mul_f32 v35, v40, v40", "v_add_f32 v36, v42, v43", "v_mul_f32 v37, v41, v41"]
    for e in range(2, 24):
        if e >= 4: t.append(f"v_add_f32 v{34 + 2*(e&1)}, v{34 + 2*(e&1)}, v{40+e}")
        t.append(f"v_fmac_f32 v{35 + 2*(e&1)}, v{40+e}, v{40+e}")
    t += ["v_add_f32 v34, v34, v36", "v_add_f32 v35, v35, v37",
          "v_add_f32_dpp v34, v34, v34 row_ror:8 row_mask:0xf bank_mask:0xf",
          "v_add_f32_dpp v35, v35, v35 row_ror:8 row_mask:0xf bank_mask:0xf",
          "v_mov_b32 v36, v34", "v_mov_b32 v37, v35",
          "v_permlane16_swap_b32 v34, v36", "v_permlane16_swap_b32 v35, v37",
          "v_add_f32 v34, v34, v36", "v_add_f32 v35, v35, v37",
          "v_mov_b32 v36, v34", "v_mov_b32 v37, v35",
          "v_permlane32_swap_b32 v34, v36", "v_permlane32_swap_b32 v35, v37",
          "v_add_f32 v34, v34, v36", "v_add_f32 v35, v35, v37",
          f"s_lshl_b32 s51, s{S_WV}, 6", f"s_add_u32 s51, s51, {LDS_X}",
          "v_lshlrev_b32 v38, 3, v16", "v_add_u32 v39, s51, v38", f"v_add_u32 v38, {LDS_X}, v38",
          "ds_write_b64 v39, v[34:35]", "s_waitcnt lgkmcnt(0)", "s_barrier",
          "ds_read_b64 v[64:65], v38", "ds_read_b64 v[66:67], v38 offset:64", "ds_read_b64 v[68:69], v38 offset:128", "ds_read_b64 v[70:71], v38 offset:192",
          "s_lshr_b32 s51, s2, 1", f"s_mul_i32 s51, s51, 20480", "s_and_b32 s52, s2, 1", "s_lshl_b32 s52, s52, 7", "s_add_u32 s51, s51, s52",
          f"s_add_u32 s51, s51, {WS_XN}" ,
          "v_lshlrev_b32 v72, 4, v16",
          "v_lshl_add_u32 v72, v19, 8, v72",
          "v_add_u32 v73, 4096, v72", "v_cndmask_b32 v73, v33, v73, vcc",
          "v_add_f32 v64, v64, v66", "v_add_f32 v65, v65, v67", "v_add_f32 v68, v68, v70", "v_add_f32 v69, v69, v71",
          "v_add_f32 v64, v64, v68", "v_add_f32 v65, v65, v69",
          "v_mul_f32 v64, 0x3acccccd, v64", "v_mul_f32 v65, 0x3acccccd, v65",
          "v_fma_f32 v65, -v64, v64, v65", "v_max_f32 v65, 0, v65", "v_add_f32 v65, 0x3727c5ac, v65",
          "v_rsq_f32 v65, v65", "v_mul_f32 v64, v64, v65"]
    for e in range(24): t.append(f"v_fma_f32 v{40+e}, v{40+e}, v65, -v64")
    for d in range(12): t.append(f"v_cvt_pk_bf16_f32 v{20+d}, v{40+2*d}, v{41+2*d}")
    t += [f"buffer_store_dwordx4 v[20:23], v72, {srd('ws')}, s51 offen {sc1}",
          f"buffer_store_dwordx4 v[24:27], v72, {srd('ws')}, s51 offen offset:2048 {sc1}",
          f"buffer_store_dwordx4 v[28:31], v73, {srd('ws')}, s51 offen {sc1}"]
    return seg("\n".join(t))

def kv_setup():
    t = f"""
    v_and_b32 v16, 15, v0
    v_lshrrev_b32 v17, 4, v0
    s_lshr_b32 s54, s{S_WV}, 1
    s_and_b32 s55, s{S_WV}, 1
    v_lshrrev_b32 v18, 1, v16
    v_xor_b32 v18, v18, v17
    v_lshlrev_b32 v18, 4, v18
    v_lshl_add_u32 v2, v16, 7, v18
    s_lshl_b32 s51, s54, 14
    v_add_u32 v2, s51, v2
    v_xor_b32 v3, 64, v2
    v_lshrrev_b32 v18, 2, v16
    v_and_b32 v19, 1, v17
    v_lshl_or_b32 v19, v19, 2, v18
    v_lshl_add_u32 v18, v17, 3, v18
    v_lshlrev_b32 v18, 8, v18
    v_and_b32 v20, 3, v16
    v_lshl_add_u32 v18, v20, 3, v18
    v_add_u32 v18, {LDS_W}, v18
    s_lshl_b32 s51, s55, 2
    v_xor_b32 v19, s51, v19
    v_lshl_add_u32 v4, v19, 5, v18
    v_xor_b32 v5, 32, v4
    v_xor_b32 v6, 64, v4
    v_xor_b32 v7, 96, v4
    v_lshrrev_b32 v18, 3, v0
    s_lshl_b32 s51, s{S_J}, 8
    s_lshl_b32 s52, s{S_WV}, 6
    s_add_u32 s51, s51, s52
    v_add_u32 v18, s51, v18
    v_lshlrev_b32 v18, 10, v18
    v_and_b32 v19, 7, v0
    v_xor_b32 v19, v19, v17
    v_lshl_add_u32 v8, v19, 4, v18
    v_xor_b32 v9, 64, v8
    v_add_u32 v9, {8192-1024}, v9
    v_add_u32 v10, {2*(8192-1024)}, v8
    v_add_u32 v11, {2*(8192-1024)}, v9
    s_lshl_b32 s51, s{S_WV}, 4
    v_add_u32 v18, s51, v17
    v_lshlrev_b32 v18, 13, v18
    s_lshl_b32 s51, s{S_H}, 8
    v_add_u32 v18, s51, v18
    v_lshlrev_b32 v19, 1, v17
    v_xor_b32 v19, v19, v16
    v_lshl_add_u32 v12, v19, 4, v18
    v_add_u32 v13, {32768-1024}, v12
    v_xor_b32 v14, 128, v12
    v_add_u32 v14, {2*(32768-1024)}, v14
    v_add_u32 v15, {32768-1024}, v14
    v_lshlrev_b32 v1, 4, v0
    s_lshl_b32 s56, s{S_WV}, 13
    s_lshl_b32 s57, s{S_WV}, 12
    s_add_u32 s57, s57, {LDS_W}
    """
    return seg(t)

def dma_A(s):
    out = []
    for grp in range(2):
        out.append(Ins(f"s_add_u32 m0, s56, {(s&1)*32768 + grp*4096}"))
        out.append(Ins(f"s_mov_b32 s58, {s*128 + grp*32768}"))
        for n in range(4):
            out.append(Ins(f"buffer_load_dwordx4 v{8+n}, {srd('ckv')}, s58 offen offset:{n*1024} lds", tag=("w", "A", s & 1, s)))
    return out
def dma_W(s, part):
    out = [Ins(f"s_add_u32 m0, s57, {(s&1)*32768 + part*16384}"), Ins(f"s_mov_b32 s59, {s*524288}")]
    for n in range(4):
        out.append(Ins(f"buffer_load_dwordx4 v{12+n}, {srd('wuv' if part else 'wuk')}, s59 offen offset:{n*1024} lds", tag=("w", f"W{part}", s & 1, s)))
    return out
def rd_A(s, i, kk):
    return Ins(f"ds_read_b128 {reg(AF(i,kk))}, v{2+kk} offset:{(s&1)*32768 + i*2048}", tag=("r", "A", s & 1, s))
def rd_W(s, j):
    out = []; st = j & 1; part = j >> 2
    for kk in range(2):
        for hf in range(2):
            b = WF(st, kk)[1] + 2 * hf
            out.append(Ins(f"ds_read_b64_tr_b16 a[{b}:{b+1}], v{4+(j&3)} offset:{(s&1)*32768 + part*16384 + kk*8192 + hf*1024}", tag=("r", f"W{part}", s & 1, s)))
    return out

def kv_prologue_dma():
    return dma_A(0) + dma_W(0, 0) + dma_W(0, 1) + dma_A(1) + dma_W(1, 0) + dma_W(1, 1)

def kv_main(NS=8):
    main = []
    for s in range(NS):
        for j in range(8):
            for i in range(8):
                for kk in range(2):
                    d = acc_kv(i, j); c = "0" if (s == 0 and kk == 0) else None
                    main.append(mfma(d, WF(j & 1, kk), AF(i, kk), c) if j < 4 else mfma(d, AF(i, kk), WF(j & 1, kk), c))
    pre = [need([("A", 0), ("W0", 0)]), Ins("s_barrier")] + rd_W(0, 0) + [rd_A(0, i, kk) for i in range(8) for kk in range(2)]
    sy = Stream("sync", 3); ra = Stream("ra", 1); dm = Stream("dma", 0)
    for s in range(NS):
        b = s * 128
        for j in range(1, 9):
            ss, jj = (s, j) if j < 8 else (s + 1, 0)
            g0 = b + (j - 1) * 16
            if j == 4:
                sy.add(need([("W1", s)], lg=0), g0, g0); sy.add("s_barrier", g0, g0)
                if s + 2 < NS:
                    spread(dm, dma_W(s + 2, 0) + dma_A(s + 2), g0 + 3, 4)
            if j == 8 and s + 1 < NS:
                sy.add(need([("A", s + 1), ("W0", s + 1)], lg=0), g0, g0); sy.add("s_barrier", g0, g0)
                if s + 2 < NS:
                    spread(dm, dma_W(s + 2, 1), g0 + 19, 4)
            if ss < NS:
                for x in rd_W(ss, jj): sy.add(x, g0, g0 + 6)
        if s + 1 < NS:
            for i in range(8):
                for kk in range(2):
                    g = b + 112 + 2 * i + kk
                    ra.add(rd_A(s + 1, i, kk), g, g + 8)
    gaps, over = place(len(main), [sy, ra, dm])
    return pre + weave(main, gaps), over

def kv_epilogue(sc1=""):
    t = [f"s_lshl_b32 s51, s{S_H}, 19", f"s_lshl_b32 s52, s{S_J}, 16", "s_add_u32 s51, s51, s52", "s_lshl_b32 s52, s54, 15", "s_add_u32 s51, s51, s52",
         "s_lshl_b32 s52, s55, 11", "s_add_u32 s60, s51, s52", f"s_add_u32 s60, s60, {WS_K}",
         "s_lshl_b32 s52, s55, 13", "s_add_u32 s61, s51, s52", f"s_add_u32 s61, s61, {WS_V}"]
    def pack(a, b):
        r = []
        A, B = a[1], b[1]
        r += [f"v_cvt_pk_bf16_f32 v{A}, v{A}, v{A+1}", f"v_cvt_pk_bf16_f32 v{A+1}, v{A+2}, v{A+3}",
              f"v_cvt_pk_bf16_f32 v{A+2}, v{B}, v{B+1}", f"v_cvt_pk_bf16_f32 v{A+3}, v{B+2}, v{B+3}"]
        return r
    for i in range(8):
        t.append(f"s_add_u32 s62, s60, {(i&1)*16384 + (i>>1)*4096}")
        for pr in range(2):
            a, b = acc_kv(i, 2 * pr), acc_kv(i, 2 * pr + 1)
            t += pack(a, b)
            t.append(f"buffer_store_dwordx4 {reg(a)}, v1, {srd('ws')}, s62 offen offset:{pr*1024} {sc1}")
    tmp = acc_kv(0, 1)[1], acc_kv(1, 1)[1], acc_kv(2, 1)[1], acc_kv(3, 1)[1]
    for jj in range(4):
        for p in range(2):
            t.append(f"s_add_u32 s62, s61, {p*16384 + jj*2048}")
            for kk in range(2):
                a, b = acc_kv(4 * kk + p, 4 + jj), acc_kv(4 * kk + 2 + p, 4 + jj)
                if a[0] == "a":
                    ta, tb = tmp[2 * p], tmp[2 * p + 1]
                    for e in range(4): t += [f"v_accvgpr_read_b32 v{ta+e}, a{a[1]+e}", f"v_accvgpr_read_b32 v{tb+e}, a{b[1]+e}"]
                    a, b = ("v", ta), ("v", tb)
                t += pack(a, b)
                t.append(f"buffer_store_dwordx4 {reg(a)}, v1, {srd('ws')}, s62 offen offset:{kk*1024} {sc1}")
    return seg("\n".join(t))

def kernel_kv(name):
    end = f"L_end_{name}"
    m, over = kv_main()
    stamp_reset()
    segs = [stamp(), entry(["ws", "x", "ckv", "wuk", "wuv"], end), kv_setup(), ln_loads(), kv_prologue_dma(), stamp(), ln_compute(), stamp(), m[:2], stamp(), m[2:], stamp(), kv_epilogue(), stamp(), stamp_flush(0), seg(f"{end}:\ns_endpgm")]
    path = [(s, 0) for s in segs]
    n = resolve([path]); check_lds([path])
    print(name, "overfull", over, "nops", n, "instrs", sum(len(s) for s in segs))
    return "".join(render(s) for s in segs)
```

```python
from common import *
import common
NS = 10
LDS_RP = 0
slotW = lambda s: 90112 + 24576 * ((s + 2) % 3)
acc = lambda cb, qb: ("v", 32 + 16 * cb + 4 * qb)
AF = lambda st, qb, kk: ("a", 32 * st + 8 * qb + 4 * kk)
WFr = lambda st, kk: ("a", 96 + 8 * st + 4 * kk)
S_PAR, S_HALF, S_B1, S_B2 = 54, 55, 63, 64
QSCALE = 0x3e0293ee

def qf_setup():
    t = f"""
    s_and_b32 s{S_PAR}, s{S_WV}, 1
    s_lshr_b32 s{S_HALF}, s{S_WV}, 1
    s_mov_b32 s{S_B1}, s{S_J}
    s_sub_u32 s{S_B2}, 15, s{S_J}
    v_lshlrev_b32 v1, 4, v0
    v_and_b32 v28, 15, v0
    v_lshrrev_b32 v29, 4, v0
    s_cmp_eq_u32 s{S_PAR}, 0
    s_cselect_b32 s51, s{S_B1}, s{S_B2}
    s_lshl_b32 s51, s51, 3
    s_add_u32 s52, s51, s{S_HALF}
    s_mul_i32 s52, s52, 20480
    v_add_u32 v2, s52, v1
    v_add_u32 v4, {4*20480}, v2
    s_sub_u32 s52, s51, s{S_HALF}
    s_add_u32 s52, s52, 3
    s_mul_i32 s52, s52, 20480
    v_add_u32 v3, s52, v1
    v_add_u32 v5, {4*20480}, v3
    s_lshl_b32 s51, s{S_WV}, 4
    v_add_u32 v30, s51, v29
    v_lshlrev_b32 v30, 13, v30
    s_lshl_b32 s52, s{S_H}, 8
    v_add_u32 v30, s52, v30
    v_lshlrev_b32 v31, 1, v29
    v_xor_b32 v31, v31, v28
    v_lshl_add_u32 v6, v31, 4, v30
    v_add_u32 v7, {32768-1024}, v6
    v_xor_b32 v8, 128, v6
    v_add_u32 v8, {2*(32768-1024)}, v8
    v_add_u32 v9, {32768-1024}, v8
    v_lshrrev_b32 v30, 3, v0
    v_add_u32 v30, s51, v30
    s_movk_i32 s52, 3456
    v_mul_lo_u32 v30, v30, s52
    s_lshl_b32 s52, s{S_H}, 7
    v_add_u32 v30, s52, v30
    v_and_b32 v31, 1, v29
    v_lshlrev_b32 v31, 1, v31
    v_and_b32 v27, 7, v0
    v_xor_b32 v31, v31, v27
    v_lshl_add_u32 v10, v31, 4, v30
    v_xor_b32 v31, 4, v31
    v_lshl_add_u32 v11, v31, 4, v30
    v_add_u32 v11, {8*3456-1024}, v11
    v_lshrrev_b32 v30, 2, v28
    v_and_b32 v31, 1, v29
    v_lshl_or_b32 v31, v31, 2, v30
    v_lshl_add_u32 v30, v29, 3, v30
    v_and_b32 v27, 3, v28
    v_lshlrev_b32 v27, 3, v27
    v_lshl_add_u32 v26, v30, 8, v27
    v_lshl_add_u32 v12, v31, 5, v26
    v_add_u32 v12, 90112, v12
    """
    for cb in range(1, 8): t += f"v_xor_b32 v{12+cb}, {32*cb}, v12\n"
    t += f"""
    v_lshl_add_u32 v26, v30, 7, v27
    v_lshrrev_b32 v31, 3, v28
    v_and_b32 v25, 1, v29
    v_lshl_or_b32 v31, v25, 1, v31
    v_lshl_add_u32 v20, v31, 5, v26
    v_add_u32 v20, {90112+16384}, v20
    v_xor_b32 v21, 32, v20
    v_xor_b32 v22, 64, v20
    v_xor_b32 v23, 96, v20
    v_lshrrev_b32 v30, 2, v28
    v_lshl_add_u32 v30, v29, 2, v30
    v_and_b32 v31, 7, v30
    v_xor_b32 v31, s{S_WV}, v31
    v_lshl_add_u32 v26, v30, 8, v27
    v_lshl_add_u32 v26, v31, 5, v26
    v_xor_b32 v27, 128, v26
    s_lshl_b32 s51, s{S_WV}, 3
    v_add_u32 v30, s51, v29
    s_movk_i32 s52, 1280
    v_mul_lo_u32 v30, v30, s52
    v_lshlrev_b32 v31, 1, v29
    v_xor_b32 v31, v31, v28
    v_lshl_add_u32 v24, v31, 4, v30
    v_xor_b32 v31, 8, v31
    v_lshl_add_u32 v25, v31, 4, v30
    v_add_u32 v25, {4*1280-1024}, v25
    s_cmp_lt_u32 s2, 54
    s_cselect_b32 s{SRD['w2']}, s{SRD['w2']}, s{SRD['wo']}
    s_cselect_b32 s{SRD['w2']+1}, s{SRD['w2']+1}, s{SRD['wo']+1}
    s_cselect_b32 s{SRD['w2']+2}, s{SRD['w2']+2}, s{SRD['wo']+2}
    s_cselect_b32 s51, 0, 54
    s_sub_u32 s51, s2, s51
    s_mul_i32 s65, s51, 40960
    s_mul_i32 s66, s2, 40960
    s_lshl_b32 s51, s{S_WV}, 10
    s_add_u32 s66, s66, s51
    s_add_u32 s66, s66, {WS_WF}
    s_cmp_lt_u32 s2, 182
    s_cselect_b32 s66, s66, {OOB}
    s_lshl_b32 s56, s{S_WV}, 12
    s_lshl_b32 s57, s{S_WV}, 11
    """
    return seg(t)

def ld_A(s):
    out = [Ins(f"s_mov_b32 s58, {WS_XN + s*2048}")]
    for qb in range(4):
        for kk in range(2):
            out.append(Ins(f"buffer_load_dwordx4 {reg(AF(s%3,qb,kk))}, v{2+qb}, {srd('ws')}, s58 offen offset:{kk*1024}"))
    return out
def dma_W(s, ffn):
    out = [Ins(f"s_add_u32 m0, s56, {slotW(s)}"), Ins(f"s_mov_b32 s59, {s*524288}")]
    for n in range(4):
        out.append(Ins(f"buffer_load_dwordx4 v{6+n}, {srd('wq')}, s59 offen offset:{n*1024} lds", tag=("w", "QW", s % 3, s)))
    if ffn:
        out += [Ins(f"s_add_u32 m0, s57, {slotW(s)+16384}"), Ins(f"s_mov_b32 s59, {s*221184}")]
        for n in range(2):
            out.append(Ins(f"buffer_load_dwordx4 v{10+n}, {srd('w1')}, s59 offen offset:{n*1024} lds", tag=("w", "QW", s % 3, s)))
    return out
def rd_W(s, cb, st):
    out = []; so = slotW(s) - 90112
    for kk in range(2):
        for hf in range(2):
            b = WFr(st, kk)[1] + 2 * hf
            if cb < 8: a, off = 12 + cb, so + kk * 8192 + hf * 1024
            else: a, off = 20 + cb - 8, so + kk * 4096 + hf * 512
            out.append(Ins(f"ds_read_b64_tr_b16 a[{b}:{b+1}], v{a} offset:{off}", tag=("r", "QW", s % 3, s)))
    return out
def rp_dma():
    out = []
    for pn in range(5):
        out += [Ins(f"s_add_u32 m0, s57, {LDS_RP + pn*8192}"), Ins(f"s_add_u32 s60, s65, {pn*256}")]
        for n in range(2):
            out.append(Ins(f"buffer_load_dwordx4 v{24+n}, {srd('w2')}, s60 offen offset:{n*1024} lds", tag=("w", "RP", 0, 0)))
    return out
def rp_move(sc1=""):
    rd = []; st = []
    for t in range(10):
        b = 224 + 4 * (t % 8)
        rd.append([Ins(f"ds_read_b64_tr_b16 v[{b+2*hf}:{b+2*hf+1}], v{26+(t&1)} offset:{LDS_RP + (t>>1)*8192 + hf*4096}", tag=("r", "RP", 0, 0)) for hf in range(2)])
        st.append([Ins(f"s_add_u32 s60, s66, {t*4096}"), Ins(f"buffer_store_dwordx4 v[{b}:{b+3}], v1, {srd('ws')}, s60 offen {sc1}")])
    return rd, st

def qf_prologue(ffn):
    return dma_W(0, ffn) + ld_A(0) + dma_W(1, ffn) + ld_A(1) + dma_W(2, ffn) + rp_dma()

def qf_main(ffn, tail_dma, sc1=""):
    cols = ([8, 9, 10, 11] if ffn else []) + list(range(8))
    nc = len(cols); per = nc * 8
    main = []
    for s in range(NS):
        for ci, cb in enumerate(cols):
            st = (s * nc + ci) % 3
            for qb in range(4):
                for kk in range(2):
                    main.append(mfma(acc(cb, qb), WFr(st, kk), AF(s % 3, qb, kk), "0" if (s == 0 and kk == 0) else None))
    pre = [need([("QW", 0)]), Ins("s_barrier")] + rd_W(0, cols[0], 0) + rd_W(0, cols[1], 1)
    sy = Stream("sync", 3); dm = Stream("dma", 0); rp = Stream("rp", 1)
    for s in range(NS):
        b = s * per
        if s + 2 < NS: gA = spread(dm, ld_A(s + 2), b + 1, 3)
        for ci in range(nc):
            J = s * nc + ci + 2
            ss, cj = divmod(J, nc)
            g0 = b + ci * 8
            if cj == 0 and ss < NS:
                nd = [("QW", ss)] + ([("RP", 0)] if s == 1 else [])
                sy.add(need(nd, lg=0), g0, g0); sy.add("s_barrier", g0, g0)
                extra = (dma_W(s + 3, ffn) if s + 3 < NS else []) + tail_dma.get(s, [])
                spread(dm, extra, g0 + 3, 2)
            if ss < NS:
                for x in rd_W(ss, cols[cj], J % 3): sy.add(x, g0, g0 + 5)
        if s == 2:
            rd, st = rp_move(sc1)
            g = b + 30
            for t in range(10):
                for x in rd[t]: rp.add(x, g + 6 * t, g + 6 * t + 40)
                if t >= 2:
                    for x in st[t - 2]: rp.add(x, g + 6 * t + 3, g + 6 * t + 40)
            for t in (8, 9):
                for x in st[t]: rp.add(x, g + 6 * t + 14, g + 6 * t + 50)
    gaps, over = place(len(main), [sy, rp, dm])
    return pre + weave(main, gaps), over

LDS_QX = 98304
def qf_epilogue(ffn, sc1=""):
    t = []
    t += [f"s_mov_b32 s60, {QSCALE}", f"s_mov_b32 s61, {QSCALE}", f"s_lshl_b32 s51, s{S_WV}, 14", f"s_add_u32 s51, s51, {LDS_QX}", "v_add_u32 v2, s51, v1",
          f"s_lshl_b32 s51, s{S_HALF}, 15", f"s_add_u32 s51, s51, {LDS_QX}", "v_add_u32 v3, s51, v1"]
    out = seg("\n".join(t))
    out += [Ins("s_waitcnt lgkmcnt(0)"), Ins("s_barrier")]
    for qb in range(4):
        for ds in range(4):
            A, B = acc(2 * ds, qb)[1], acc(2 * ds + 1, qb)[1]
            out += seg("\n".join([f"v_pk_mul_f32 v[{x}:{x+1}], v[{x}:{x+1}], s[60:61]" for x in (A, A + 2, B, B + 2)] +
                [f"v_cvt_pk_bf16_f32 v{A}, v{A}, v{A+1}", f"v_cvt_pk_bf16_f32 v{A+1}, v{A+2}, v{A+3}",
                 f"v_cvt_pk_bf16_f32 v{A+2}, v{B}, v{B+1}", f"v_cvt_pk_bf16_f32 v{A+3}, v{B+2}, v{B+3}"]))
            out.append(Ins(f"ds_write_b128 v2, v[{A}:{A+3}] offset:{(qb*4+ds)*1024}", tag=("w", "QX", 0, 0)))
    if ffn:
        t = [f"s_cmp_eq_u32 s{S_PAR}, 0", f"s_cselect_b32 s51, s{S_B1}, s{S_B2}", "s_lshl_b32 s51, s51, 3",
             f"s_add_u32 s52, s51, s{S_HALF}", f"s_sub_u32 s53, s51, s{S_HALF}", "s_add_u32 s53, s53, 3",
             f"s_mul_i32 s52, s52, {182*1024}", f"s_mul_i32 s53, s53, {182*1024}", f"s_lshl_b32 s51, s{S_H}, 11", f"s_add_u32 s51, s51, {WS_CH}",
             "s_add_u32 s52, s52, s51", "s_add_u32 s53, s53, s51"]
        for qb in range(4):
            if qb == 2: t += [f"s_add_u32 s52, s52, {4*182*1024}", f"s_add_u32 s53, s53, {4*182*1024}"]
            for m in range(2):
                A, B = acc(8 + 2 * m, qb)[1], acc(9 + 2 * m, qb)[1]
                rs = [A, A + 1, A + 2, A + 3, B, B + 1, B + 2, B + 3]; T = 224 + 8 * (m & 1)
                t += [f"v_mul_f32 v{T+e}, 0xbfb8aa3b, v{r}" for e, r in enumerate(rs)]
                t += [f"v_exp_f32 v{T+e}, v{T+e}" for e in range(8)]
                t += [f"v_add_f32 v{T+e}, 1.0, v{T+e}" for e in range(8)]
                t += [f"v_rcp_f32 v{T+e}, v{T+e}" for e in range(8)]
                t += [f"v_mul_f32 v{r}, v{r}, v{T+e}" for e, r in enumerate(rs)]
                t += [f"v_cvt_pk_bf16_f32 v{A}, v{A}, v{A+1}", f"v_cvt_pk_bf16_f32 v{A+1}, v{A+2}, v{A+3}",
                      f"v_cvt_pk_bf16_f32 v{A+2}, v{B}, v{B+1}", f"v_cvt_pk_bf16_f32 v{A+3}, v{B+2}, v{B+3}",
                      f"buffer_store_dwordx4 v[{A}:{A+3}], v1, {srd('ws')}, s{52+(qb&1)} offen offset:{m*1024} {sc1}"]
        out += seg("\n".join(t))
    return out
def q_readback():
    out = []
    for blk in range(2):
        for f in range(16):
            out.append(Ins(f"ds_read_b128 a[{64*blk+4*f}:{64*blk+4*f+3}], v3 offset:{blk*16384 + f*1024}", tag=("r", "QX", 0, 0)))
    return out
```

```python
import sys
sys.path.insert(0, "dev")
from asmlib import module
import common
common.STAMPS = 'stamps' in sys.argv
import ph_kv
which = sys.argv[1] if len(sys.argv) > 1 else "kv"
out = sys.argv[2] if len(sys.argv) > 2 else "k_kv.s"
ks = []; ls = []
import k2
if "qa" in which.split(","):
    pass
if "kv" in which.split(","):
    ks.append(("kv_kernel", ph_kv.kernel_kv("kv"), 512, 102, 256)); ls.append(("kv_kernel", 256, 256, 163840))
if "qa" in which.split(","):
    ks.append(("qa_kernel", k2.kernel_qa("qa"), 512, 102, 256)); ls.append(("qa_kernel", 256, 256, 163840))
if "f" in which.split(","):
    import ph_f
    ks.append(("fin_kernel", ph_f.kernel_f("fin"), 512, 102, 256)); ls.append(("fin_kernel", 256, 256, 163840))
open(out, "w").write(module(ls, ks))
```
